```python
import torch

def _softmax(x, axis=-1):
    return torch.softmax(x, dim=axis)
def _gelu(x):
    return torch.nn.functional.gelu(x, approximate="tanh")
def _silu(x):
    return torch.nn.functional.silu(x)
def _sigmoid(x):
    return torch.sigmoid(x)
def _layernorm(x, axis=-1, eps=1e-5):
    m = x.mean(dim=axis, keepdim=True)
    v = x.var(dim=axis, keepdim=True, unbiased=False)
    return (x - m) / torch.sqrt(v + eps)
def _scatter_add(tgt, idx, src, axis=0):
    return tgt.clone().index_add_(axis, idx, src)
def _segment_sum(src, seg, n):
    out = torch.zeros((n,) + src.shape[1:], dtype=src.dtype)
    return out.index_add_(0, seg, src)
def _pad(x, pw):
    flat = tuple(v for pair in reversed(pw) for v in pair)
    return torch.nn.functional.pad(x, flat)

kernel_name = 'standalone__sliding_block_cached__sampling'

def setup_inputs():

    _w = (lambda a: (lambda t: t.to(torch.bfloat16) if t.is_floating_point() else t)(torch.as_tensor(a)))
    B, Sq, D = 16, 4, 512
    Hq, Hkv, Sk, Dh = 32, 8, 4096, 128
    assert Hq % Hkv == 0, (Hq, Hkv)
    return {
        "x": _w((lambda *s: torch.randn(*s, dtype=torch.bfloat16) * 0.8)(B, Sq, D)),
        "k_cache": _w((lambda *s: torch.randn(*s, dtype=torch.bfloat16) * 0.8)(B, Hkv, Sk, Dh)),
        "v_cache": _w((lambda *s: torch.randn(*s, dtype=torch.bfloat16) * 0.05)(B, Hkv, Sk, Dh)),
        "wq": _w((lambda *s: torch.randn(*s, dtype=torch.bfloat16) * 0.8)(D, Hq * Dh) * (D ** -0.5)),
        "wo": _w((lambda *s: torch.randn(*s, dtype=torch.bfloat16) * 0.05)(Hq * Dh, D) * ((Hq * Dh) ** -0.5)),
    }

def reference(x, k_cache, v_cache, wq, wo):
    B, Sq, D = x.shape
    Hq, Dh = 32, 128
    Hkv, Sk = k_cache.shape[1], k_cache.shape[2]
    W = min(4096, max(256, Sk // 4))
    rep = Hq // Hkv
    q = (lambda x, *d: x.permute(*d))((x @ wq).reshape(B, Sq, Hq, Dh), 0, 2, 1, 3)
    k = (lambda x, n, axis: torch.repeat_interleave(x, n, dim=axis))(k_cache[:, :, Sk - W:, :], rep, axis=1)
    v = (lambda x, n, axis: torch.repeat_interleave(x, n, dim=axis))(v_cache[:, :, Sk - W:, :], rep, axis=1)
    scores = torch.einsum("bhqd,bhkd->bhqk", q, k) * (Dh ** -0.5)
    p = _softmax(scores, axis=-1)
    o = torch.einsum("bhqk,bhkd->bhqd", p, v)
    return (lambda x, *d: x.permute(*d))(o, 0, 2, 1, 3).reshape(B, Sq, Hq * Dh) @ wo
```

```python
class Asm:
    def __init__(self):
        self.lines = []
        self.hdr = []
        self.kernels = []
        self.uid = 0
    def launch(self, name, grid, block, lds):
        self.hdr.append(f"; @launch kernel={name} grid=({grid[0]},{grid[1]},{grid[2]}) block=({block[0]},{block[1]},{block[2]}) lds={lds}")
    def comment_hdr(self, s):
        self.hdr.append("; " + s)
    def __call__(self, s=""):
        for l in s.split("\n"):
            l = l.rstrip()
            if l.strip() == "":
                continue
            self.lines.append(l if l.lstrip().endswith(":") or l.startswith(".") else "    " + l.strip())
    def label(self, base="L"):
        self.uid += 1
        return f"{base}_{self.uid}"
    def begin(self, name):
        self.lines.append(".text")
        self.lines.append(f".globl {name}")
        self.lines.append(".p2align 8")
        self.lines.append(f".type {name},@function")
        self.lines.append(f"{name}:")
    def end(self, name, vgpr, sgpr, accum=None, agpr=0):
        if accum is None:
            accum = (vgpr + 3) // 4 * 4
        nfv = accum + agpr if agpr else vgpr
        self.lines.append("    s_endpgm")
        self.kernels.append((name, nfv, sgpr, accum))
    def text(self):
        out = list(self.hdr)
        out.append('.amdgcn_target "amdgcn-amd-amdhsa--gfx950"')
        out += self.lines
        out.append('.section .rodata,"a"')
        for name, nfv, sgpr, accum in self.kernels:
            out.append(".p2align 6")
            out.append(f".amdhsa_kernel {name}")
            out.append(f"  .amdhsa_next_free_vgpr {nfv}")
            out.append(f"  .amdhsa_next_free_sgpr {sgpr}")
            out.append(f"  .amdhsa_accum_offset {accum}")
            out.append("  .amdhsa_group_segment_fixed_size 0")
            out.append("  .amdhsa_kernarg_size 64")
            out.append("  .amdhsa_user_sgpr_count 2")
            out.append("  .amdhsa_user_sgpr_kernarg_segment_ptr 1")
            out.append("  .amdhsa_system_sgpr_workgroup_id_x 1")
            out.append("  .amdhsa_float_denorm_mode_32 3")
            out.append("  .amdhsa_float_denorm_mode_16_64 3")
            out.append(".end_amdhsa_kernel")
        return "\n".join(out) + "\n"
```

```python
import sys
from asmgen import Asm

KN = "standalone__sliding_block_cached__sampling_kernel"

WS_STAMP = 0
WS_EPOCH = 0x40000
WS_QG = 0x100000
WS_OG = 0x200000
WS_PG = 0x400000
WS_SIZE = 0x600000
L_V = 0
L_WQS = 65536
L_WOS = 0
L_P = 131072
L_RED = L_P
L_OF = 147456
L_SMAX = 155648
L_SSUM = L_SMAX + 256
L_SM = L_SSUM + 256
L_CNT = L_SM + 64
LDS_BYTES = 163840

SCALE_C = 1.4426950408889634 * (128 ** -0.5)
import struct
def f32bits(x): return struct.unpack("<I", struct.pack("<f", x))[0]

def gen(diag=False, kf="nt", vf="nt", wqf="nt", wof="nt", xf="", stf="sc1", ldf="sc1", lprio=False, spin=40000):
    a = Asm()
    F = lambda x: (" " + x) if x else ""
    a.hdr.append(f"; @launch grid=(256,1,1) block=(512,1,1) lds={LDS_BYTES}")
    a.begin(KN)
    def nop(n):
        while n > 0:
            k = min(n, 16); a(f"s_nop {k-1}"); n -= k
    stampn = [0]
    def stamp(k):
        if diag:
            a(f"s_memrealtime s[{72+2*k}:{73+2*k}]")
            a("s_waitcnt lgkmcnt(0)")
    sW, sG, sT, sB, sS, sMT, sMEM, sHP, sNQ, sGRP, sLW = 3, 4, 5, 6, 7, 52, 53, 54, 55, 56, 57
    sTAG, sC, sTMP, sTMP2, sSPIN = 58, 59, 60, 61, 62
    sK, sV, sWQ, sWO, sX, sWS, sOUT = "s[8:11]", "s[12:15]", "s[16:19]", "s[20:23]", "s[24:27]", "s[28:31]", "s[32:35]"
    a(f"""
    s_cmp_ge_u32 s2, 256
    s_cbranch_scc1 L_end
    s_load_dwordx16 s[36:51], s[0:1], 0
    """)
    if diag:
        for k in range(8): a(f"s_mov_b64 s[{72+2*k}:{73+2*k}], 0")
        a("s_memrealtime s[72:73]")
    a(f"""
    v_lshrrev_b32 v1, 6, v0
    v_and_b32 v0, 63, v0
    v_mov_b32 v2, {L_CNT}
    v_readfirstlane_b32 s{sW}, v1
    v_mov_b32 v4, 0
    v_mov_b32 v5, 0
    s_and_b32 s{sG}, s2, 7
    s_lshr_b32 s{sT}, s2, 3
    s_lshr_b32 s{sB}, s{sT}, 1
    s_and_b32 s{sS}, s{sT}, 1
    s_lshr_b32 s{sMT}, s{sT}, 3
    s_and_b32 s{sMEM}, s{sT}, 7
    s_and_b32 s{sHP}, s{sMEM}, 1
    s_lshr_b32 s{sNQ}, s{sMEM}, 1
    s_lshl_b32 s{sGRP}, s{sG}, 2
    s_add_u32 s{sGRP}, s{sGRP}, s{sMT}
    s_and_b32 s{sLW}, s{sW}, 3
    s_cmp_lg_u32 s{sW}, 0
    s_cbranch_scc1 L_noinit
    ds_write_b64 v2, v[4:5]
L_noinit:
    s_lshl_b32 s{sTMP}, s{sB}, 3
    s_add_u32 s{sTMP}, s{sTMP}, s{sG}
    s_lshl_b32 s{sTMP}, s{sTMP}, 20
    s_lshl_b32 s{sTMP2}, s{sS}, 17
    s_add_u32 s{sTMP}, s{sTMP}, s{sTMP2}
    s_add_u32 s{sTMP}, s{sTMP}, {3072*256}
    s_lshl_b32 s{sTMP2}, s{sMT}, 8
    s_add_u32 s{sTMP2}, s{sTMP2}, {WS_EPOCH}
    s_waitcnt lgkmcnt(0)
    s_add_u32 s64, s50, s{sTMP2}
    s_addc_u32 s65, s51, 0
    s_load_dword s{sTAG}, s[64:65], 0
    s_add_u32 s8, s38, s{sTMP}
    s_addc_u32 s9, s39, 0
    s_mov_b32 s10, {128*1024}
    s_mov_b32 s11, 0x20000
    s_add_u32 s12, s40, s{sTMP}
    s_addc_u32 s13, s41, 0
    s_mov_b32 s14, {128*1024}
    s_mov_b32 s15, 0x20000
    s_mov_b32 s16, s42
    s_mov_b32 s17, s43
    s_mov_b32 s18, {4<<20}
    s_mov_b32 s19, 0x20000
    s_mov_b32 s20, s44
    s_mov_b32 s21, s45
    s_mov_b32 s22, {4<<20}
    s_mov_b32 s23, 0x20000
    s_mov_b32 s24, s36
    s_mov_b32 s25, s37
    s_mov_b32 s26, {64*1024}
    s_mov_b32 s27, 0x20000
    s_mov_b32 s28, s50
    s_mov_b32 s29, s51
    s_mov_b32 s30, {WS_SIZE}
    s_mov_b32 s31, 0x20000
    s_mov_b32 s32, s46
    s_mov_b32 s33, s47
    s_mov_b32 s34, {64*1024}
    s_mov_b32 s35, 0x20000
    s_barrier
    """)
    a(f"""
    v_and_b32 v1, 15, v0
    v_lshrrev_b32 v2, 4, v0
    s_cmp_ge_u32 s{sW}, 4
    s_cbranch_scc1 L_cwave
    """)
    if lprio: a("s_setprio 2")
    vX = 8
    vA = 24
    vAcc = 88
    a(f"""
    s_lshl_b32 s{sTMP}, s{sMT}, 14
    s_lshl_b32 s{sTMP2}, s{sLW}, 8
    s_add_u32 s{sTMP}, s{sTMP}, s{sTMP2}
    v_lshlrev_b32 v3, 10, v1
    v_lshlrev_b32 v4, 4, v2
    v_add3_u32 v3, v3, v4, s{sTMP}
    """)
    for u in range(4):
        a(f"buffer_load_dwordx4 v[{vX+4*u}:{vX+4*u+3}], v3, {sX}, 0 offen offset:{u*64}{F(xf)}")
    a(f"""
    s_lshl_b32 s{sTMP}, s{sG}, 10
    s_lshl_b32 s{sTMP2}, s{sMEM}, 7
    s_add_u32 s{sTMP}, s{sTMP}, s{sTMP2}
    s_lshl_b32 s{sTMP2}, s{sLW}, 20
    s_add_u32 s{sTMP}, s{sTMP}, s{sTMP2}
    v_lshrrev_b32 v4, 3, v0
    v_lshlrev_b32 v4, 13, v4
    v_and_b32 v5, 7, v0
    v_lshlrev_b32 v5, 4, v5
    v_add3_u32 v4, v4, v5, s{sTMP}
    s_lshl_b32 s63, s{sLW}, 14
    s_add_u32 s63, s63, {L_WQS}
    """)
    for i in range(16):
        a(f"s_add_u32 m0, s63, {i*1024}")
        a(f"s_mov_b32 s{sTMP}, {i*65536}")
        a(f"buffer_load_dwordx4 v4, {sWQ}, s{sTMP} offen{F(wqf)} lds")
    a(f"""
    v_lshrrev_b32 v5, 2, v0
    v_and_b32 v5, 3, v5
    v_lshl_add_u32 v5, v2, 3, v5
    v_lshlrev_b32 v5, 7, v5
    v_and_b32 v6, 3, v0
    v_lshlrev_b32 v6, 3, v6
    v_add3_u32 v5, v5, v6, s63
    s_waitcnt vmcnt(0)
    """)
    stamp(1)
    for u in range(4):
        for ct in range(4):
            r = vA + (u*4+ct)*4
            for ii in range(2):
                a(f"ds_read_b64_tr_b16 v[{r+2*ii}:{r+2*ii+1}], v5 offset:{u*4096 + ii*512 + ct*32}")
        a("s_waitcnt lgkmcnt(0)")
        for ct in range(4):
            r = vA + (u*4+ct)*4
            c = "0" if u == 0 else f"v[{vAcc+4*ct}:{vAcc+4*ct+3}]"
            a(f"v_mfma_f32_16x16x32_bf16 v[{vAcc+4*ct}:{vAcc+4*ct+3}], v[{r}:{r+3}], v[{vX+4*u}:{vX+4*u+3}], {c}")
    a(f"""
    s_lshl_b32 s{sTMP}, s{sLW}, 10
    s_add_u32 s{sTMP}, s{sTMP}, {L_RED}
    v_lshlrev_b32 v6, 4, v0
    v_add_u32 v7, s{sTMP}, v6
    s_lshl_b32 s{sTMP}, s{sLW}, 12
    s_add_u32 s{sTMP}, s{sTMP}, {L_RED}
    v_add_u32 v6, s{sTMP}, v6
    """)
    nop(8)
    for ct in range(4):
        a(f"ds_write_b128 v7, v[{vAcc+4*ct}:{vAcc+4*ct+3}] offset:{ct*4096}")
    def lds_sync(cnt_off, target, name):
        a(f"""
        s_waitcnt lgkmcnt(0)
        v_mov_b32 v100, {L_CNT + cnt_off}
        v_mov_b32 v101, 1
        s_mov_b64 s[66:67], exec
        s_mov_b64 exec, 1
        ds_add_u32 v100, v101
        s_mov_b64 exec, s[66:67]
        s_mov_b32 s{sSPIN}, 0
{name}:
        ds_read_b32 v101, v100
        s_add_u32 s{sSPIN}, s{sSPIN}, 1
        s_waitcnt lgkmcnt(0)
        v_readfirstlane_b32 s{sTMP}, v101
        s_cmp_gt_u32 s{sSPIN}, 0x100000
        s_cbranch_scc1 {name}_done
        s_cmp_lt_u32 s{sTMP}, {target}
        s_cbranch_scc1 {name}
{name}_done:
        """)
    lds_sync(0, 4, "L_syncL")
    for k in range(4):
        a(f"ds_read_b128 v[{vA+4*k}:{vA+4*k+3}], v6 offset:{k*1024}")
    a(f"""
    s_mul_i32 s{sTAG}, s{sTAG}, 0x9E3779B1
    s_add_u32 s{sTAG}, s{sTAG}, 0x85EBCA6B
    s_waitcnt lgkmcnt(0)
    """)
    for r in range(4):
        a(f"v_add_f32 v{vA+r}, v{vA+r}, v{vA+4+r}")
        a(f"v_add_f32 v{vA+8+r}, v{vA+8+r}, v{vA+12+r}")
    for r in range(4):
        a(f"v_add_f32 v{vA+r}, v{vA+r}, v{vA+8+r}")
    a(f"""
    v_cvt_pk_bf16_f32 v8, v{vA}, v{vA+1}
    v_cvt_pk_bf16_f32 v9, v{vA+2}, v{vA+3}
    v_mov_b32 v10, s{sTAG}
    v_mov_b32 v11, 0
    s_lshl_b32 s{sTMP}, s{sGRP}, 3
    s_add_u32 s{sTMP}, s{sTMP}, s{sMEM}
    s_lshl_b32 s{sTMP}, s{sTMP}, 12
    s_lshl_b32 s{sTMP2}, s{sLW}, 10
    s_add_u32 s{sTMP}, s{sTMP}, s{sTMP2}
    s_add_u32 s{sTMP}, s{sTMP}, {WS_QG}
    v_lshlrev_b32 v6, 4, v0
    buffer_store_dwordx4 v[8:11], v6, {sWS}, s{sTMP} offen{F(stf)}
    """)
    stamp(2)
    if lprio: a("s_setprio 0")
    a(f"""
    s_and_b32 s{sTMP}, s{sLW}, 1
    s_lshl_b32 s{sTMP}, s{sTMP}, 2
    v_add_u32 v4, s{sTMP}, v2
    v_lshlrev_b32 v4, 1, v4
    v_xor_b32 v4, v4, v1
    v_lshlrev_b32 v4, 4, v4
    v_lshl_add_u32 v4, v2, 8, v4
    s_lshl_b32 s63, s{sLW}, 10
    """)
    for i in range(32):
        a(f"s_add_u32 s{sTMP}, s63, {i*4096}")
        a(f"s_mov_b32 m0, s{sTMP}")
        a("s_nop 0")
        a(f"buffer_load_dwordx4 v4, {sV}, s{sTMP} offen{F(vf)} lds")
    stamp(3)
    a("s_waitcnt vmcnt(16)")
    a("s_branch L_join1")
    a("L_cwave:")
    vK = 16
    vQ = 144
    vQt = 160
    vS = 176
    a(f"""
    v_lshrrev_b32 v3, 3, v1
    v_lshlrev_b32 v3, 4, v3
    v_and_b32 v4, 7, v1
    v_add_u32 v3, v3, v4
    v_lshlrev_b32 v3, 8, v3
    v_lshlrev_b32 v4, 4, v2
    s_lshl_b32 s{sTMP}, s{sLW}, 13
    v_add3_u32 v3, v3, v4, s{sTMP}
    """)
    for gi in range(4):
        a(f"s_mov_b32 s{sTMP}, {gi*32768}")
        for T in range(2):
            for j in range(4):
                r = vK + ((gi*2+T)*4+j)*4
                a(f"buffer_load_dwordx4 v[{r}:{r+3}], v3, {sK}, s{sTMP} offen offset:{T*2048+j*64}{F(kf)}")
    stamp(1)
    a(f"""
    v_lshrrev_b32 v4, 2, v1
    v_lshlrev_b32 v4, 13, v4
    v_lshrrev_b32 v5, 1, v2
    v_lshlrev_b32 v5, 10, v5
    v_add_u32 v4, v4, v5
    v_and_b32 v5, 1, v2
    v_lshlrev_b32 v5, 9, v5
    v_add_u32 v4, v4, v5
    v_and_b32 v5, 3, v0
    v_lshlrev_b32 v5, 4, v5
    v_add_u32 v4, v4, v5
    s_and_b32 s{sTMP}, s{sB}, 3
    s_lshl_b32 s{sTMP}, s{sTMP}, 6
    s_lshl_b32 s{sTMP2}, s{sGRP}, 15
    s_add_u32 s{sTMP}, s{sTMP}, s{sTMP2}
    s_add_u32 s63, s{sTMP}, {WS_QG}
    s_add_u32 s68, s63, 4096
    s_waitcnt lgkmcnt(0)
    s_mul_i32 s{sTAG}, s{sTAG}, 0x9E3779B1
    s_add_u32 s{sTAG}, s{sTAG}, 0x85EBCA6B
    s_mov_b32 s{sSPIN}, 0
L_qpoll:
    """)
    for j in range(4):
        so = "s63" if j < 2 else "s68"
        a(f"buffer_load_dwordx4 v[{vQ+4*j}:{vQ+4*j+3}], v4, {sWS}, {so} offen offset:{(j&1)*2048}{F(ldf)}")
        a(f"buffer_load_dwordx4 v[{vQt+4*j}:{vQt+4*j+3}], v4, {sWS}, {so} offen offset:{(j&1)*2048+256}{F(ldf)}")
    a(f"""
    s_add_u32 s{sSPIN}, s{sSPIN}, 1
    s_waitcnt vmcnt(0)
    """)
    a(f"v_xor_b32 v5, s{sTAG}, v{vQ+2}")
    a(f"v_xor_b32 v6, s{sTAG}, v{vQt+2}")
    for j in range(1, 4):
        a(f"v_xor_b32 v7, s{sTAG}, v{vQ+4*j+2}")
        a(f"v_xor_b32 v8, s{sTAG}, v{vQt+4*j+2}")
        a(f"v_or3_b32 v5, v5, v7, v8")
    a(f"""
    v_or_b32 v5, v5, v6
    v_cmp_ne_u32 vcc, 0, v5
    s_cmp_gt_u32 s{sSPIN}, {spin}
    s_cbranch_scc1 L_qdone
    s_nop 4
    s_cbranch_vccnz L_qpoll
L_qdone:
    """)
    stamp(2)
    for j in range(4):
        a(f"v_mov_b32 v{vQ+4*j+2}, v{vQt+4*j}")
        a(f"v_mov_b32 v{vQ+4*j+3}, v{vQt+4*j+1}")
    nop(2)
    for j in range(4):
        for tl in range(8):
            r = vK + (tl*4+j)*4
            c = "0" if j == 0 else f"v[{vS+4*tl}:{vS+4*tl+3}]"
            a(f"v_mfma_f32_16x16x32_bf16 v[{vS+4*tl}:{vS+4*tl+3}], v[{r}:{r+3}], v[{vQ+4*j}:{vQ+4*j+3}], {c}")
    nop(8)
    a(f"v_max3_f32 v5, v{vS}, v{vS+1}, v{vS+2}")
    a(f"v_max3_f32 v6, v{vS+3}, v{vS+4}, v{vS+5}")
    k = 6
    while k + 3 < 32:
        a(f"v_max3_f32 v5, v5, v{vS+k}, v{vS+k+1}")
        a(f"v_max3_f32 v6, v6, v{vS+k+2}, v{vS+k+3}")
        k += 4
    a(f"v_max3_f32 v5, v5, v{vS+30}, v{vS+31}")
    a(f"""
    v_max_f32 v5, v5, v6
    v_mov_b32 v6, v5
    s_nop 1
    v_permlane32_swap_b32 v5, v6
    v_max_f32 v5, v5, v6
    v_mov_b32 v6, v5
    s_nop 1
    v_permlane16_swap_b32 v5, v6
    v_max_f32 v5, v5, v6
    s_lshl_b32 s{sTMP}, s{sLW}, 6
    s_add_u32 s{sTMP}, s{sTMP}, {L_SMAX}
    v_lshlrev_b32 v7, 2, v1
    v_add_u32 v8, s{sTMP}, v7
    ds_write_b32 v8, v5
    """)
    lds_sync(4, 4, "L_syncC")
    a(f"""
    v_add_u32 v9, {L_SMAX}, v7
    ds_read_b32 v10, v9
    ds_read_b32 v11, v9 offset:64
    ds_read_b32 v12, v9 offset:128
    ds_read_b32 v13, v9 offset:192
    s_mov_b32 s{sC}, {f32bits(SCALE_C):#x}
    s_waitcnt lgkmcnt(0)
    v_max3_f32 v10, v10, v11, v12
    v_max_f32 v10, v10, v13
    v_mul_f32 v10, s{sC}, v10          ; Mc
    v_add_u32 v9, {L_SM}, v7
    ds_write_b32 v9, v10
    """)
    for k in range(32):
        a(f"v_fma_f32 v{vS+k}, v{vS+k}, s{sC}, -v10")
    for k in range(32):
        a(f"v_exp_f32 v{vS+k}, v{vS+k}")
    nop(1)
    a(f"v_add_f32 v5, v{vS}, v{vS+1}")
    a(f"v_add_f32 v6, v{vS+2}, v{vS+3}")
    for k in range(4, 32, 2):
        a(f"v_add_f32 v5, v5, v{vS+k}")
        a(f"v_add_f32 v6, v6, v{vS+k+1}")
    vP = vQt
    for gi in range(4):
        for T in range(2):
            tl = gi*2+T
            a(f"v_cvt_pk_bf16_f32 v{vP+gi*4+T*2}, v{vS+4*tl}, v{vS+4*tl+1}")
            a(f"v_cvt_pk_bf16_f32 v{vP+gi*4+T*2+1}, v{vS+4*tl+2}, v{vS+4*tl+3}")
    a(f"""
    v_add_f32 v5, v5, v6
    v_mov_b32 v6, v5
    s_lshl_b32 s{sTMP}, s{sLW}, 10
    s_add_u32 s{sTMP}, s{sTMP}, {L_P}
    v_permlane32_swap_b32 v5, v6
    v_lshlrev_b32 v11, 4, v0
    v_add_u32 v11, s{sTMP}, v11
    v_add_f32 v5, v5, v6
    v_mov_b32 v6, v5
    s_nop 1
    v_permlane16_swap_b32 v5, v6
    v_add_f32 v5, v5, v6
    v_add_u32 v8, {L_SSUM - L_SMAX}, v8
    ds_write_b32 v8, v5
    """)
    for gi in range(4):
        a(f"ds_write_b128 v11, v[{vP+gi*4}:{vP+gi*4+3}] offset:{gi*4096}")
    a("s_waitcnt lgkmcnt(0)")
    stamp(3)
    a("L_join1:")
    a("s_barrier")
    vPf = 16
    vVf = 48
    vO = 80
    a(f"""
    v_lshrrev_b32 v3, 2, v0
    v_and_b32 v3, 3, v3               ; r
    v_and_b32 v4, 1, v2
    v_lshl_add_u32 v3, v4, 2, v3      ; 4*(q&1)+r
    v_lshrrev_b32 v4, 1, v2
    v_lshl_add_u32 v4, v4, 4, v3      ; key0
    v_lshlrev_b32 v4, 8, v4
    v_xor_b32 v3, s{sW}, v3
    v_lshl_add_u32 v4, v3, 5, v4
    v_and_b32 v3, 3, v0
    v_lshl_add_u32 v4, v3, 3, v4      ; v4 = base (G<8)
    v_add_u32 v5, 65536, v4           ; v5 = base (G>=8)
    v_lshlrev_b32 v6, 4, v0
    v_add_u32 v6, {L_P}, v6
    """)
    first = [True]
    def pv(groups, preread_p=False):
        for n, G in enumerate(groups):
            if not preread_p:
                a(f"ds_read_b128 v[{vPf+4*n}:{vPf+4*n+3}], v6 offset:{G*1024}")
            base = "v4" if G < 8 else "v5"
            for ii in range(2):
                a(f"ds_read_b64_tr_b16 v[{vVf+4*n+2*ii}:{vVf+4*n+2*ii+1}], {base} offset:{(G%8)*8192+ii*2048}")
        a("s_waitcnt lgkmcnt(0)")
        for n, G in enumerate(groups):
            c = "0" if first[0] else f"v[{vO}:{vO+3}]"
            first[0] = False
            a(f"v_mfma_f32_16x16x32_bf16 v[{vO}:{vO+3}], v[{vVf+4*n}:{vVf+4*n+3}], v[{vPf+4*n}:{vPf+4*n+3}], {c}")
    pv(list(range(0, 8)))
    a(f"""
    v_lshlrev_b32 v7, 2, v1
    v_add_u32 v8, {L_SSUM}, v7
    ds_read_b32 v10, v8
    ds_read_b32 v11, v8 offset:64
    ds_read_b32 v12, v8 offset:128
    ds_read_b32 v13, v8 offset:192
    v_add_u32 v8, {L_SM}, v7
    ds_read_b32 v14, v8
    s_waitcnt lgkmcnt(0)
    v_add_f32 v10, v10, v11
    v_add_f32 v12, v12, v13
    v_add_f32 v10, v10, v12
    v_cmp_gt_u32 vcc, 2, v2
    s_nop 1
    v_cndmask_b32 v87, v10, v14, vcc      ; v87 = stat
    s_barrier
    """)
    stamp(4)
    a(f"""
    s_cmp_lt_u32 s{sW}, 4
    s_cbranch_scc1 L_lw2
    s_lshl_b32 s{sTMP}, s{sG}, 9
    s_lshl_b32 s{sTMP2}, s{sHP}, 8
    s_add_u32 s{sTMP}, s{sTMP}, s{sTMP2}
    s_lshl_b32 s{sTMP2}, s{sLW}, 2
    s_add_u32 s{sTMP}, s{sTMP}, s{sTMP2}
    s_lshl_b32 s{sTMP}, s{sTMP}, 10
    s_lshl_b32 s{sTMP2}, s{sNQ}, 8
    s_add_u32 s{sTMP}, s{sTMP}, s{sTMP2}
    s_and_b32 s{sTMP2}, s{sLW}, 1
    s_lshl_b32 s{sTMP2}, s{sTMP2}, 2
    v_add_u32 v9, s{sTMP2}, v2
    v_lshlrev_b32 v9, 1, v9
    v_xor_b32 v9, v9, v1
    v_lshlrev_b32 v9, 4, v9
    v_lshl_add_u32 v9, v2, 10, v9
    v_add_u32 v9, s{sTMP}, v9
    s_lshl_b32 s63, s{sLW}, 10
    s_add_u32 s63, s63, {L_WOS}
    """)
    for i in range(16):
        a(f"s_add_u32 m0, s63, {i*4096}")
        a(f"s_mov_b32 s{sTMP}, {i*16*1024}")
        a(f"buffer_load_dwordx4 v9, {sWO}, s{sTMP} offen{F(wof)} lds")
    a(f"""
    s_branch L_join3
L_lw2:
    s_waitcnt vmcnt(4)
L_join3:
    s_barrier
    """)
    pv(list(range(8, 14)))
    a(f"ds_read_b128 v[{vPf}:{vPf+3}], v6 offset:{14*1024}")
    a(f"ds_read_b128 v[{vPf+4}:{vPf+7}], v6 offset:{15*1024}")
    a(f"""
    s_cmp_ge_u32 s{sW}, 4
    s_cbranch_scc1 L_join4
    s_waitcnt vmcnt(0)
L_join4:
    s_barrier
    """)
    stamp(5)
    pv([14, 15], preread_p=True)
    a(f"""
    s_lshl_b32 s{sTMP}, s{sGRP}, 3
    s_add_u32 s{sTMP}, s{sTMP}, s{sMEM}
    s_lshl_b32 s{sTMP}, s{sTMP}, 3
    s_add_u32 s{sTMP}, s{sTMP}, s{sW}
    s_lshl_b32 s{sTMP}, s{sTMP}, 10
    s_add_u32 s{sTMP}, s{sTMP}, {WS_OG}
    v_lshlrev_b32 v7, 4, v0
    v_mov_b32 v86, s{sTAG}
    s_nop 3
    v_cvt_pk_bf16_f32 v84, v{vO}, v{vO+1}
    v_cvt_pk_bf16_f32 v85, v{vO+2}, v{vO+3}
    buffer_store_dwordx4 v[84:87], v7, {sWS}, s{sTMP} offen{F(stf)}
    v_lshrrev_b32 v8, 2, v1
    v_lshlrev_b32 v8, 14, v8
    v_lshrrev_b32 v9, 1, v2
    v_lshlrev_b32 v9, 10, v9
    v_add_u32 v8, v8, v9
    v_and_b32 v9, 1, v2
    v_lshlrev_b32 v9, 8, v9
    v_add_u32 v8, v8, v9
    v_and_b32 v9, 3, v0
    v_lshlrev_b32 v9, 4, v9
    v_add_u32 v8, v8, v9
    s_lshl_b32 s{sTMP}, s{sLW}, 11
    s_lshr_b32 s{sTMP2}, s{sW}, 2
    s_lshl_b32 s63, s{sHP}, 1
    s_add_u32 s{sTMP2}, s{sTMP2}, s63
    s_lshl_b32 s{sTMP2}, s{sTMP2}, 6
    s_add_u32 s{sTMP}, s{sTMP}, s{sTMP2}
    s_lshl_b32 s{sTMP2}, s{sGRP}, 16
    s_add_u32 s{sTMP}, s{sTMP}, s{sTMP2}
    s_add_u32 s63, s{sTMP}, {WS_OG}
    s_add_u32 s68, s63, 8192
    """)
    vG = 16
    vW = 96
    def opoll_loads():
        a(f"buffer_load_dwordx4 v[{vG}:{vG+3}], v8, {sWS}, s63 offen{F(ldf)}")
        a(f"buffer_load_dwordx4 v[{vG+4}:{vG+7}], v8, {sWS}, s63 offen offset:512{F(ldf)}")
        a(f"buffer_load_dwordx4 v[{vG+8}:{vG+11}], v8, {sWS}, s68 offen{F(ldf)}")
        a(f"buffer_load_dwordx4 v[{vG+12}:{vG+15}], v8, {sWS}, s68 offen offset:512{F(ldf)}")
    opoll_loads()
    a(f"""
    s_waitcnt vmcnt(5)
    s_barrier
    """)
    for kk in range(8):
        for ii in range(2):
            a(f"ds_read_b64_tr_b16 v[{vW+4*kk+2*ii}:{vW+4*kk+2*ii+1}], v4 offset:{kk*8192+ii*2048}")
    a(f"""
    s_mov_b32 s{sSPIN}, 0
L_opoll:
    s_waitcnt vmcnt(0)
    v_xor_b32 v9, s{sTAG}, v{vG+2}
    v_xor_b32 v10, s{sTAG}, v{vG+6}
    v_xor_b32 v11, s{sTAG}, v{vG+10}
    v_xor_b32 v12, s{sTAG}, v{vG+14}
    v_or3_b32 v9, v9, v10, v11
    v_or_b32 v9, v9, v12
    v_cmp_ne_u32 vcc, 0, v9
    s_add_u32 s{sSPIN}, s{sSPIN}, 1
    s_cmp_gt_u32 s{sSPIN}, {spin}
    s_cbranch_scc1 L_odone
    s_nop 4
    s_cbranch_vccz L_odone
    """)
    opoll_loads()
    a(f"""
    s_branch L_opoll
L_odone:
    """)
    stamp(6)
    a(f"""
    v_max_f32 v9, v{vG+3}, v{vG+11}
    v_sub_f32 v10, v{vG+3}, v9
    v_sub_f32 v11, v{vG+11}, v9
    v_exp_f32 v10, v10
    v_exp_f32 v11, v11
    s_nop 0
    v_mul_f32 v12, v10, v{vG+7}
    v_fma_f32 v12, v11, v{vG+15}, v12
    v_rcp_f32 v12, v12
    s_mov_b32 s{sTMP}, 0xffff0000
    v_mul_f32 v10, v10, v12
    v_mul_f32 v11, v11, v12
    """)
    for ii in range(2):
        for d in range(2):
            s0 = vG + 4*ii + d
            s1 = vG + 8 + 4*ii + d
            a(f"""
            v_lshlrev_b32 v12, 16, v{s0}
            v_and_b32 v13, s{sTMP}, v{s0}
            v_lshlrev_b32 v14, 16, v{s1}
            v_and_b32 v15, s{sTMP}, v{s1}
            v_mul_f32 v12, v10, v12
            v_mul_f32 v13, v10, v13
            v_fma_f32 v12, v11, v14, v12
            v_fma_f32 v13, v11, v15, v13
            v_cvt_pk_bf16_f32 v{32+2*ii+d}, v12, v13
            """)
    a(f"""
    s_lshl_b32 s{sTMP}, s{sW}, 10
    s_add_u32 s{sTMP}, s{sTMP}, {L_OF}
    v_add_u32 v9, s{sTMP}, v7
    ds_write_b128 v9, v[32:35]
    v_add_u32 v9, {L_OF}, v7
    s_waitcnt lgkmcnt(0)
    s_barrier
    """)
    vF = 40
    for kk in range(8):
        a(f"ds_read_b128 v[{vF+4*kk}:{vF+4*kk+3}], v9 offset:{kk*1024}")
    a("s_waitcnt lgkmcnt(0)")
    for kk in range(8):
        c = "0" if kk == 0 else "v[80:83]"
        a(f"v_mfma_f32_16x16x32_bf16 v[80:83], v[{vW+4*kk}:{vW+4*kk+3}], v[{vF+4*kk}:{vF+4*kk+3}], {c}")
    a(f"""
    s_lshl_b32 s{sTMP}, s{sMT}, 2
    s_add_u32 s{sTMP}, s{sTMP}, s{sNQ}
    s_lshl_b32 s69, s{sTMP}, 17
    s_add_u32 s69, s69, {WS_PG}
    s_lshl_b32 s{sTMP2}, s{sG}, 1
    s_add_u32 s{sTMP2}, s{sTMP2}, s{sHP}   ; contrib
    s_lshl_b32 s{sTMP}, s{sTMP2}, 9
    s_lshl_b32 s63, s{sW}, 6
    s_add_u32 s{sTMP}, s{sTMP}, s63
    s_add_u32 s{sTMP}, s{sTMP}, s69
    v_lshlrev_b32 v9, 13, v1
    v_lshl_add_u32 v9, v2, 4, v9
    s_mov_b32 s63, 0x05030201
    s_mov_b32 s68, 0x06050302
    s_mov_b32 s70, 0x07060503
    v_mov_b32 v87, s{sTAG}
    v_perm_b32 v84, v81, v80, s63
    v_perm_b32 v85, v82, v81, s68
    v_perm_b32 v86, v83, v82, s70
    buffer_store_dwordx4 v[84:87], v9, {sWS}, s{sTMP} offen{F(stf)}
    """)
    stamp(7)
    a(f"""
    s_cmp_lg_u32 s{sW}, 0
    s_cbranch_scc1 L_fin
    s_lshl_b32 s{sTMP}, s{sTMP2}, 13
    s_add_u32 s{sTMP}, s{sTMP}, s69
    s_add_u32 s68, s{sTMP}, 4096
    v_lshrrev_b32 v8, 5, v0
    v_lshlrev_b32 v8, 9, v8
    v_and_b32 v9, 31, v0
    v_lshl_add_u32 v8, v9, 4, v8
    s_mov_b32 s{sSPIN}, 0
L_fpoll:
    """)
    for i in range(8):
        so = f"s{sTMP}" if i < 4 else "s68"
        a(f"buffer_load_dwordx4 v[{16+4*i}:{19+4*i}], v8, {sWS}, {so} offen offset:{(i%4)*1024}{F(ldf)}")
    a(f"""
    s_add_u32 s{sSPIN}, s{sSPIN}, 1
    s_waitcnt vmcnt(0)
    v_xor_b32 v9, s{sTAG}, v19
    """)
    for i in range(1, 8):
        a(f"v_xor_b32 v10, s{sTAG}, v{19+4*i}")
        a("v_or_b32 v9, v9, v10")
    a(f"""
    v_cmp_ne_u32 vcc, 0, v9
    s_cmp_gt_u32 s{sSPIN}, {spin}
    s_cbranch_scc1 L_fdone
    s_nop 4
    s_cbranch_vccnz L_fpoll
L_fdone:
    s_mov_b32 s63, 0x0504030c
    s_mov_b32 s70, 0x0403020c
    s_mov_b32 s71, 0xffffff00
    """)
    for i in range(8):
        b = 16 + 4*i
        d = 48 if i == 0 else 52
        a(f"""
        v_lshlrev_b32 v{d}, 8, v{b}
        v_perm_b32 v{d+1}, v{b+1}, v{b}, s63
        v_perm_b32 v{d+2}, v{b+2}, v{b+1}, s70
        v_and_b32 v{d+3}, s71, v{b+2}
        """)
        if i > 0:
            for r in range(4):
                a(f"v_add_f32 v{48+r}, v{48+r}, v{52+r}")
    for r in range(4):
        a(f"v_mov_b32 v{52+r}, v{48+r}")
    nop(2)
    for r in range(4):
        a(f"v_permlane32_swap_b32 v{48+r}, v{52+r}")
    for r in range(4):
        a(f"v_add_f32 v{48+r}, v{48+r}, v{52+r}")
    a(f"""
    v_cvt_pk_bf16_f32 v56, v48, v49
    v_cvt_pk_bf16_f32 v57, v50, v51
    s_lshl_b32 s{sTMP}, s{sMT}, 4
    s_add_u32 s{sTMP}, s{sTMP}, s{sTMP2}
    s_lshl_b32 s{sTMP}, s{sTMP}, 10
    s_lshl_b32 s63, s{sNQ}, 8
    s_add_u32 s{sTMP}, s{sTMP}, s63
    v_and_b32 v9, 31, v0
    v_lshlrev_b32 v9, 3, v9
    s_mov_b32 exec_hi, 0
    buffer_store_dwordx2 v[56:57], v9, {sOUT}, s{sTMP} offen
    s_mov_b32 exec_hi, -1
    s_or_b32 s{sTMP}, s{sG}, s{sMEM}
    s_cmp_lg_u32 s{sTMP}, 0
    s_cbranch_scc1 L_fin
    s_load_dword s63, s[64:65], 0
    s_lshl_b32 s{sTMP}, s{sMT}, 8
    s_add_u32 s{sTMP}, s{sTMP}, {WS_EPOCH}
    s_waitcnt lgkmcnt(0)
    s_add_u32 s63, s63, 1
    v_mov_b32 v9, s63
    v_mov_b32 v10, 0
    s_mov_b64 exec, 1
    buffer_store_dword v9, v10, {sWS}, s{sTMP} offen{F(stf)}
    s_mov_b64 exec, -1
L_fin:
    """)
    if diag:
        a(f"""
        s_waitcnt vmcnt(0)
        s_memrealtime s[88:89]
        s_waitcnt lgkmcnt(0)
        s_lshl_b32 s{sTMP}, s2, 3
        s_add_u32 s{sTMP}, s{sTMP}, s{sW}
        s_lshl_b32 s{sTMP}, s{sTMP}, 7
        v_mov_b32 v1, 0
        s_mov_b64 exec, 1
        """)
        for k in range(0, 9, 2):
            for e in range(4):
                idx = 72 + 2*k + e
                if idx <= 89: a(f"v_mov_b32 v{2+e}, s{idx}")
                else: a(f"v_mov_b32 v{2+e}, 0")
            a(f"buffer_store_dwordx4 v[2:5], v1, {sWS}, s{sTMP} offen offset:{k*8}")
            a("s_waitcnt vmcnt(0)")
    a("L_end:")
    a.end(KN, 208, 96)
    return a.text()

if __name__ == "__main__":
    import argparse
    p = argparse.ArgumentParser()
    p.add_argument("-o", default="k1.s")
    p.add_argument("--diag", action="store_true")
    for f in ["kf", "vf", "wqf", "wof"]:
        p.add_argument("--" + f, default="nt")
    p.add_argument("--xf", default="")
    p.add_argument("--stf", default="sc1")
    p.add_argument("--ldf", default="sc1")
    p.add_argument("--lprio", action="store_true")
    args = p.parse_args()
    open(args.o, "w").write(gen(diag=args.diag, kf=args.kf, vf=args.vf, wqf=args.wqf, wof=args.wof, xf=args.xf, stf=args.stf, ldf=args.ldf, lprio=args.lprio))
```
